```python
import torch

def _softmax(x, axis=-1):
    return torch.softmax(x, dim=axis)
def _gelu(x):
    return torch.nn.functional.gelu(x, approximate="tanh")
def _silu(x):
    return torch.nn.functional.silu(x)
def _sigmoid(x):
    return torch.sigmoid(x)
def _layernorm(x, axis=-1, eps=1e-5):
    m = x.mean(dim=axis, keepdim=True)
    v = x.var(dim=axis, keepdim=True, unbiased=False)
    return (x - m) / torch.sqrt(v + eps)
def _scatter_add(tgt, idx, src, axis=0):
    return tgt.clone().index_add_(axis, idx, src)
def _segment_sum(src, seg, n):
    out = torch.zeros((n,) + src.shape[1:], dtype=src.dtype)
    return out.index_add_(0, seg, src)
def _pad(x, pw):
    flat = tuple(v for pair in reversed(pw) for v in pair)
    return torch.nn.functional.pad(x, flat)

kernel_name = 'sequential_preLN__sliding_block_cached__glu_gated_geglu__decode'

def setup_inputs():

    _w = (lambda a: (lambda t: t.to(torch.bfloat16) if t.is_floating_point() else t)(torch.as_tensor(a)))
    def _A_setup():
        B, Sq, D = 1, 1, 576
        Hq, Hkv, Sk, Dh = 32, 16, 65536, 128
        assert Hq % Hkv == 0, (Hq, Hkv)
        return {
            "x": _w((lambda *s: torch.randn(*s, dtype=torch.bfloat16) * 0.05)(B, Sq, D)),
            "k_cache": _w((lambda *s: torch.randn(*s, dtype=torch.bfloat16) * 1.6)(B, Hkv, Sk, Dh)),
            "v_cache": _w((lambda *s: torch.randn(*s, dtype=torch.bfloat16) * 0.8)(B, Hkv, Sk, Dh)),
            "wq": _w((lambda *s: torch.randn(*s, dtype=torch.bfloat16) * 1.6)(D, Hq * Dh) * (D ** -0.5)),
            "wo": _w((lambda *s: torch.randn(*s, dtype=torch.bfloat16) * 0.8)(Hq * Dh, D) * ((Hq * Dh) ** -0.5)),
        }
    _A_in = _A_setup()

    def _B_setup():
        B, S, Dm, Df = 1, 1, 576, 4608
        return {
            "x": _w((lambda *s: torch.randn(*s, dtype=torch.bfloat16) * 0.05)(B, S, Dm)),
            "w_gate": _w((lambda *s: torch.randn(*s, dtype=torch.bfloat16) * 0.4)(Dm, Df) * (Dm ** -0.5)),
            "w_up": _w((lambda *s: torch.randn(*s, dtype=torch.bfloat16) * 0.4)(Dm, Df) * (Dm ** -0.5)),
            "w_down": _w((lambda *s: torch.randn(*s, dtype=torch.bfloat16) * 0.4)(Df, Dm) * (Df ** -0.5)),
        }
    _B_in = _B_setup()

    return {
        "A_x": _A_in["x"],
        "A_k_cache": _A_in["k_cache"],
        "A_v_cache": _A_in["v_cache"],
        "A_wq": _A_in["wq"],
        "A_wo": _A_in["wo"],
        "B_x": _B_in["x"],
        "B_w_gate": _B_in["w_gate"],
        "B_w_up": _B_in["w_up"],
        "B_w_down": _B_in["w_down"],
    }

def reference(A_x, A_k_cache, A_v_cache, A_wq, A_wo, B_x, B_w_gate, B_w_up, B_w_down):
    def _A_ref(x, k_cache, v_cache, wq, wo):
        B, Sq, D = x.shape
        Hq, Dh = 32, 128
        Hkv, Sk = k_cache.shape[1], k_cache.shape[2]
        W = min(4096, max(256, Sk // 4))
        rep = Hq // Hkv
        q = (lambda x, *d: x.permute(*d))((x @ wq).reshape(B, Sq, Hq, Dh), 0, 2, 1, 3)
        k = (lambda x, n, axis: torch.repeat_interleave(x, n, dim=axis))(k_cache[:, :, Sk - W:, :], rep, axis=1)
        v = (lambda x, n, axis: torch.repeat_interleave(x, n, dim=axis))(v_cache[:, :, Sk - W:, :], rep, axis=1)
        scores = torch.einsum("bhqd,bhkd->bhqk", q, k) * (Dh ** -0.5)
        p = _softmax(scores, axis=-1)
        o = torch.einsum("bhqk,bhkd->bhqd", p, v)
        return (lambda x, *d: x.permute(*d))(o, 0, 2, 1, 3).reshape(B, Sq, Hq * Dh) @ wo

    def _B_ref(x, w_gate, w_up, w_down):
        g = torch.einsum("bsd,df->bsf", x, w_gate)
        u = torch.einsum("bsd,df->bsf", x, w_up)
        h = _gelu(g) * u
        return torch.einsum("bsf,fd->bsd", h, w_down)

    x = A_x
    h = x + _A_ref(_layernorm(x, axis=-1), A_k_cache, A_v_cache, A_wq, A_wo)
    h2 = h + _B_ref(_layernorm(h, axis=-1), B_w_gate, B_w_up, B_w_down)
    return h2
```

```python
import sys, math, struct
KN = "sequential_preLN__sliding_block_cached__glu_gated_geglu__decode_kernel"

def f2u(x): return struct.unpack("<I", struct.pack("<f", x))[0]

class Cfg:
    nt_kv = " nt"; nt_w = " nt"; nt_wq = " nt"
    st = " sc1"
    ld = " sc1"
    gate_on_v = True
    down_late = True
    stamps = False
    timeout = 1 << 20
    def __init__(self, **kw):
        for k, v in kw.items():
            assert hasattr(self, k), k
            setattr(self, k, v)

WS_H1   = 0x001000
WS_H2O  = WS_H1 + 16*16*512
WS_H2ML = WS_H2O + 16*16*16*128
WS_H3B  = WS_H2ML + 16*2*16*16
WS_H4B  = WS_H3B + 256*256
S3A = 4736
WS_H3A  = WS_H4B + 256*256
S4A = 4608
WS_H4A  = WS_H3A + 256*S3A
S3C = 9344
WS_H3C  = WS_H4A + 256*S4A
WS_END  = WS_H3C + 256*S3C
WS_STAMP = 0x800000
WS_SIZE = 0x1000000
assert WS_END <= WS_STAMP

L_CNTQ, L_FLAGQ, L_CNTV, L_CNTO = 0, 4, 8, 12
L_M = 16
L_CNTM = 24
L_L = 32
L_FLAGO, L_FLAGC, L_FLAGA = 40, 44, 48
L_QPART = 256
L_Q = 2048
L_OACC = 2560
L_OO = 3584
L_CC = 3712
L_AA = 3840
LDS_BYTES = 8192

NWAVES = 15
OOB = 0x7ff00000
SC = 1.4426950408889634 / math.sqrt(128.0)

class G:
    def __init__(self, cfg):
        self.L = []; self.cfg = cfg; self.n = 0; self.nst = 0
    def __call__(self, s): self.L.append(s)
    def lab(self, p):
        self.n += 1; return f"L_{p}_{self.n}"
    def nop(self, k):
        if k > 0: self(f"s_nop {k-1}")
    def stamp(self, name=None):
        if not self.cfg.stamps: return
        k = self.nst; self.nst += 1
        assert k < 16
        self(f"s_memrealtime s[{64+2*k}:{65+2*k}]")
    def stamp_flush(self):
        if not self.cfg.stamps: return
        A = self
        A("s_waitcnt lgkmcnt(0)")
        A("s_mov_b64 exec, -1")
        A("s_mov_b32 s52, s26"); A("s_and_b32 s53, s27, 0xffff"); A(f"s_mov_b32 s54, {WS_SIZE}"); A("s_mov_b32 s55, 0x20000")
        A("s_lshl_b32 s35, s2, 4"); A("s_add_u32 s35, s35, s28"); A("s_lshl_b32 s35, s35, 7"); A(f"s_add_u32 s35, s35, {WS_STAMP}")
        A("v_mov_b32 v3, 0")
        for k in range(self.nst):
            A(f"v_writelane_b32 v3, s{64+2*k}, {k}")
        A("v_lshlrev_b32 v4, 2, v1")
        A("s_mov_b64 exec, 0xffff")
        A("buffer_store_dword v3, v4, s[52:55], s35 offen")
        A("s_waitcnt vmcnt(0)")
        self.nst = 0
    def srd(self, d, base, size, off_sgpr=None):
        A = self
        if off_sgpr is None:
            A(f"s_mov_b32 s{d}, s{base}"); A(f"s_and_b32 s{d+1}, s{base+1}, 0xffff")
        else:
            A(f"s_add_u32 s{d}, s{base}, s{off_sgpr}"); A(f"s_addc_u32 s{d+1}, s{base+1}, 0"); A(f"s_and_b32 s{d+1}, s{d+1}, 0xffff")
        A(f"s_mov_b32 s{d+2}, {size}"); A(f"s_mov_b32 s{d+3}, 0x20000")
    def timeout_check(self, loop):
        A = self
        A("s_sub_u32 s34, s34, 1"); A(f"s_cbranch_scc0 {loop}"); A("s_branch L_end")
    def lds_wait(self, off, val, reads=(), tmp="v3"):
        A = self; L = self.lab("w"); D = self.lab("wd")
        A(f"{L}:")
        A(f"ds_read_b32 {tmp}, v2 offset:{off}")
        for r in reads: A(r)
        A("s_waitcnt lgkmcnt(0)")
        A(f"v_readfirstlane_b32 s35, {tmp}")
        A("s_nop 0")
        A(f"s_cmp_ge_u32 s35, {val}"); A(f"s_cbranch_scc1 {D}")
        self.timeout_check(L)
        A(f"{D}:")
    def lds_inc(self, off):
        A = self
        A("s_mov_b64 exec, 1"); A(f"ds_add_u32 v2, v11 offset:{off}"); A("s_mov_b64 exec, -1")
    def lds_set(self, off):
        A = self
        A("s_mov_b64 exec, 1"); A(f"ds_write_b32 v2, v11 offset:{off}"); A("s_mov_b64 exec, -1")
    def wave_sum(self, regs):
        A = self
        steps = ["row_ror:8 row_mask:0xf bank_mask:0xf", "row_ror:4 row_mask:0xf bank_mask:0xf", "row_ror:2 row_mask:0xf bank_mask:0xf",
                 "row_ror:1 row_mask:0xf bank_mask:0xf", "row_bcast:15 row_mask:0xa bank_mask:0xf", "row_bcast:31 row_mask:0xc bank_mask:0xf"]
        self.nop(2)
        for st in steps:
            for r in regs: A(f"v_add_f32_dpp {r}, {r}, {r} {st}")
            self.nop(3 - len(regs) if len(regs) < 3 else 0)
    def parity_add(self, d, y):
        A = self
        A(f"v_permlane32_swap_b32 v{d}, v{d+1}")
        A(f"v_permlane32_swap_b32 v{d+2}, v{d+3}")
        self.nop(2)
        A(f"v_add_f32_dpp v{y}, v{d+1}, v{d} row_ror:8 row_mask:0xf bank_mask:0x3")
        A(f"v_add_f32_dpp v{y}, v{d+2}, v{d+3} row_ror:8 row_mask:0xf bank_mask:0xc")
    def xrow_sum(self, regs, tmps, op="v_add_f32"):
        A = self
        for sw in ("v_permlane16_swap_b32", "v_permlane32_swap_b32"):
            for r, t in zip(regs, tmps): A(f"v_mov_b32 {t}, {r}")
            self.nop(2 if len(regs) == 1 else 1)
            for r, t in zip(regs, tmps): A(f"{sw} {r}, {t}")
            self.nop(1)
            for r, t in zip(regs, tmps): A(f"{op} {r}, {r}, {t}")
    def check_tags(self, tags, acc, loop):
        A = self
        A(f"v_xor_b32 {acc}, {tags[0]}, v10")
        for t in tags[1:]: A(f"v_bitop3_b32 {acc}, {acc}, {t}, v10 bitop3:0xf6")
        A(f"v_cmp_ne_u32 vcc, 0, {acc}")
        D = self.lab("ok")
        A(f"s_cbranch_vccz {D}")
        self.timeout_check(loop)
        A(f"{D}:")

def colmap_code(A, dst, tmp):
    A(f"v_and_b32 {dst}, 7, v1")
    A(f"v_bfe_u32 {tmp}, v1, 4, 1"); A(f"v_lshl_add_u32 {dst}, {tmp}, 5, {dst}")
    A(f"v_bfe_u32 {tmp}, v1, 3, 1"); A(f"v_lshl_add_u32 {dst}, {tmp}, 4, {dst}")
    A(f"v_bfe_u32 {tmp}, v1, 5, 1"); A(f"v_lshl_add_u32 {dst}, {tmp}, 3, {dst}")

def rowoff_code(A, dst, tmp):
    A(f"v_lshrrev_b32 {dst}, 4, v1"); A(f"v_lshlrev_b32 {dst}, 1, {dst}")
    A(f"v_bfe_u32 {tmp}, v1, 3, 1"); A(f"v_add_u32 {dst}, {dst}, {tmp}")

def mfma(A, d, a, b, c):
    cs = "0" if c is None else f"v[{c}:{c+3}]"
    A(f"v_mfma_f32_16x16x32_bf16 v[{d}:{d+3}], v[{a}:{a+3}], v[{b}:{b+3}], {cs}")

def build_b(A, dst, src):
    for d in range(4): A(f"v_and_b32 v{dst+d}, {src}, v{12+d}")

def prologue(A, cfg):
    A("s_cmp_ge_u32 s2, 256"); A("s_cbranch_scc1 L_exit")
    A.stamp()
    A("s_load_dwordx16 s[4:19], s[0:1], 0")
    A("s_load_dwordx8 s[20:27], s[0:1], 64")
    A("v_and_b32 v1, 63, v0")
    A("v_lshrrev_b32 v3, 6, v0")
    A("v_lshlrev_b32 v4, 3, v0")
    A("v_readfirstlane_b32 s28, v3")
    A("v_mov_b32 v6, 0"); A("v_mov_b32 v5, 0xff800000")
    A("v_cmp_eq_u32 vcc, 2, v0")
    A("v_mov_b32 v2, 0"); A("v_mov_b32 v11, 1")
    A("v_cndmask_b32 v6, v6, v5, vcc")
    A("v_mov_b32 v7, v6")
    A("ds_write_b64 v4, v[6:7]")
    A("s_and_b32 s29, s2, 7"); A("s_lshr_b32 s30, s2, 3")
    A("s_and_b32 s31, s30, 1"); A("s_lshl_b32 s35, s29, 1"); A("s_or_b32 s31, s31, s35")
    A("s_lshr_b32 s32, s30, 1")
    A("s_lshl_b32 s33, s29, 5"); A("s_add_u32 s33, s33, s30")
    A(f"s_mov_b32 s34, {cfg.timeout}")
    A("v_and_b32 v3, 1, v1"); A("v_cmp_eq_u32 vcc, 1, v3")
    A("v_mov_b32 v4, 0xffff"); A("v_mov_b32 v5, 0xffff0000")
    A("v_cndmask_b32 v5, v4, v5, vcc")
    A("v_bfe_u32 v3, v1, 1, 2")
    for d in range(4):
        A(f"v_cmp_eq_u32 vcc, {d}, v3"); A("s_nop 1"); A(f"v_cndmask_b32 v{12+d}, 0, v5, vcc")
    A("s_waitcnt lgkmcnt(0)")
    A("s_barrier")
    A("s_cmp_lt_u32 s28, 8"); A("s_cbranch_scc1 L_A")
    A("s_cmp_lt_u32 s28, 14"); A("s_cbranch_scc1 L_W")
    A("s_branch L_C")

def role_A(A, cfg):
    A("L_A:")
    K0, V0, D0, S0, QB, ACC = 64, 96, 32, 16, 24, 28
    A("s_lshl_b32 s48, s31, 24"); A("s_lshl_b32 s35, s32, 16"); A("s_add_u32 s48, s48, s35")
    A("s_lshl_b32 s35, s28, 13"); A("s_add_u32 s48, s48, s35"); A(f"s_add_u32 s48, s48, {61440*256}")
    A.srd(36, 6, 8192, 48); A.srd(40, 8, 8192, 48)
    A("s_movk_i32 s49, 0x1000")
    A("v_bfe_u32 v3, v1, 2, 2"); A("v_lshlrev_b32 v3, 8, v3")
    A("v_lshrrev_b32 v4, 4, v1"); A("v_lshl_add_u32 v3, v4, 6, v3")
    A("v_and_b32 v4, 3, v1"); A("v_lshl_add_u32 v3, v4, 4, v3")
    A("v_lshlrev_b32 v4, 4, v1")
    for t in range(8):
        so = "0" if t < 4 else "s49"
        A(f"buffer_load_dwordx4 v[{K0+4*t}:{K0+4*t+3}], v3, s[36:39], {so} offen offset:{(t&3)*1024}{cfg.nt_kv}")
    for t in range(8):
        so = "0" if t < 4 else "s49"
        A(f"buffer_load_dwordx4 v[{V0+4*t}:{V0+4*t+3}], v4, s[40:43], {so} offen offset:{(t&3)*1024}{cfg.nt_kv}")
    A.stamp()
    A.lds_inc(L_CNTV)
    A("v_bfe_u32 v5, v1, 3, 1"); A("v_cmp_eq_u32 s[50:51], 1, v5")
    A("v_lshlrev_b32 v5, 8, v5"); A("v_lshrrev_b32 v6, 4, v1"); A("v_lshl_add_u32 v5, v6, 6, v5")
    A("v_and_b32 v6, 3, v1"); A("v_lshl_add_u32 v5, v6, 4, v5")
    A("v_lshlrev_b32 v7, 2, v1")
    A("v_bfe_u32 v8, v1, 3, 1"); A("v_lshlrev_b32 v8, 2, v8")
    A.lds_wait(L_FLAGQ, 1, reads=[f"ds_read_b128 v[{QB}:{QB+3}], v5 offset:{L_Q}"])
    A.stamp()
    def extract(t):
        d = D0 + 4*t; s = S0 + t
        A(f"v_mov_b32_dpp v{s}, v{d} quad_perm:[0,0,0,0] row_mask:0xf bank_mask:0xf")
        for r in (1, 2, 3):
            A(f"v_add_f32_dpp v{s}, v{d+r}, v{s} quad_perm:[{r},{r},{r},{r}] row_mask:0xf bank_mask:0xf")
    for t in range(8):
        A(f"s_waitcnt vmcnt({15-t})")
        mfma(A, D0+4*t, K0+4*t, QB, None)
        if t == 2: A.nop(4)
        if t >= 2: extract(t-2)
    A.nop(4); extract(6); A.nop(2); extract(7)
    A.stamp()
    A(f"v_max3_f32 v3, v{S0}, v{S0+1}, v{S0+2}"); A(f"v_max3_f32 v3, v3, v{S0+3}, v{S0+4}")
    A(f"v_max3_f32 v3, v3, v{S0+5}, v{S0+6}"); A(f"v_max_f32 v3, v3, v{S0+7}")
    A("s_mov_b32 s52, 0x01010101"); A("s_mov_b32 s53, 0x01010101")
    A("s_mov_b64 exec, s[52:53]")
    A(f"ds_max_f32 v8, v3 offset:{L_M}")
    A("s_mov_b64 exec, 1"); A(f"ds_add_u32 v2, v11 offset:{L_CNTM}"); A("s_mov_b64 exec, -1")
    L = A.lab("wm"); D = A.lab("wmd")
    A(f"{L}:"); A(f"ds_read_b128 v[44:47], v2 offset:{L_M}"); A("s_waitcnt lgkmcnt(0)")
    A("v_readfirstlane_b32 s35, v46"); A("s_nop 0"); A("s_cmp_ge_u32 s35, 8"); A(f"s_cbranch_scc1 {D}")
    A.timeout_check(L); A(f"{D}:")
    A("v_cndmask_b32 v3, v44, v45, s[50:51]")
    A(f"s_mov_b32 s54, {f2u(SC)}")
    A("v_mul_f32 v3, s54, v3")
    for t in range(8): A(f"v_fma_f32 v{S0+t}, v{S0+t}, s54, -v3")
    for t in range(8): A(f"v_exp_f32 v{S0+t}, v{S0+t}")
    A.nop(1)
    A(f"v_add_f32 v4, v{S0}, v{S0+1}"); A(f"v_add_f32 v5, v{S0+2}, v{S0+3}")
    A(f"v_add_f32 v6, v{S0+4}, v{S0+5}"); A(f"v_add_f32 v9, v{S0+6}, v{S0+7}")
    A("v_add_f32 v4, v4, v5"); A("v_add_f32 v6, v6, v9"); A("v_add_f32 v4, v4, v6")
    A("s_mov_b64 exec, s[52:53]"); A(f"ds_add_f32 v8, v4 offset:{L_L}"); A("s_mov_b64 exec, -1")
    for t in range(8):
        A(f"v_cvt_pk_bf16_f32 v{S0+t}, v{S0+t}, v{S0+t}")
    for t in range(8):
        build_b(A, D0+4*t, f"v{S0+t}")
    A.stamp()
    A.nop(1)
    for t in range(8):
        A(f"s_waitcnt vmcnt({7-t})")
        mfma(A, ACC, V0+4*t, D0+4*t, None if t == 0 else ACC)
    A.stamp()
    A.nop(8)
    for r in range(4): A(f"ds_add_f32 v7, v{ACC+r} offset:{L_OACC + 256*r}")
    A.lds_inc(L_CNTO)
    A.stamp()
    A("s_waitcnt lgkmcnt(0)")
    A.stamp_flush()
    A("s_endpgm")

def role_W(A, cfg):
    A("L_W:")
    A("s_setprio 2")
    A("s_sub_u32 s48, s28, 8")
    A("s_and_b32 s49, s32, 3"); A("s_lshr_b32 s50, s32, 2")
    A("s_mul_i32 s51, s50, 144"); A("s_mul_i32 s35, s48, 24"); A("s_add_u32 s51, s51, s35")
    A("s_lshl_b32 s52, s51, 13")
    A("s_lshl_b32 s35, s31, 9"); A("s_add_u32 s52, s52, s35"); A("s_lshl_b32 s35, s49, 7"); A("s_add_u32 s52, s52, s35")
    A.srd(36, 10, 24*8192, 52)
    A.srd(40, 4, 1152)
    rowoff_code(A, "v8", "v3")
    A("v_and_b32 v9, 7, v1"); A("v_lshlrev_b32 v9, 4, v9")
    A("v_lshlrev_b32 v3, 4, v1")
    A("v_lshlrev_b32 v4, 1, v8")
    A("s_lshl_b32 s53, s51, 1")
    A("v_lshl_add_u32 v5, v8, 13, v9")
    A("s_mov_b32 s54, 0x10000"); A("s_mov_b32 s55, 0x20000")
    A("buffer_load_dwordx4 v[16:19], v3, s[40:43], 0 offen")
    A("buffer_load_dwordx4 v[20:23], v3, s[40:43], 0 offen offset:1024")
    for t in range(3): A(f"buffer_load_ushort v{24+t}, v4, s[40:43], s53 offen offset:{16*t}")
    for t, so in enumerate(("0", "s54", "s55")):
        A(f"buffer_load_dwordx4 v[{32+4*t}:{35+4*t}], v5, s[36:39], {so} offen{cfg.nt_wq}")
    A("s_setprio 0")
    A("v_mov_b32 v6, 0x3f803f80"); A("v_mov_b32 v28, 0"); A("v_mov_b32 v29, 0")
    colmap_code(A, "v7", "v3")
    A("s_waitcnt vmcnt(6)")
    for i in range(8):
        A(f"v_dot2_f32_bf16 v28, v{16+i}, v6, v28"); A(f"v_dot2_f32_bf16 v29, v{16+i}, v{16+i}, v29")
    A.nop(3)
    A.wave_sum(["v28", "v29"])
    A("v_readlane_b32 s56, v28, 63"); A("v_readlane_b32 s57, v29, 63")
    A(f"v_mov_b32 v30, {f2u(1.0/576)}")
    A("s_nop 0")
    A("v_mul_f32 v28, s56, v30"); A("v_mul_f32 v29, s57, v30")
    A("v_fma_f32 v29, -v28, v28, v29"); A(f"v_add_f32 v29, {f2u(1e-5)}, v29")
    A("v_rsq_f32 v29, v29")
    A("s_waitcnt vmcnt(3)")
    for t in range(3):
        A(f"v_lshlrev_b32 v{24+t}, 16, v{24+t}"); A(f"v_sub_f32 v{24+t}, v{24+t}, v28")
    for t in range(3):
        A(f"v_mul_f32 v{24+t}, v{24+t}, v29")
    for t in range(3):
        A(f"v_cvt_pk_bf16_f32 v{24+t}, v{24+t}, v{24+t}")
    for t in range(3): build_b(A, 44+4*t, f"v{24+t}")
    A.nop(1)
    for t in range(3):
        A(f"s_waitcnt vmcnt({2-t})")
        mfma(A, 56, 32+4*t, 44+4*t, None if t == 0 else 56)
    A("s_lshl_b32 s35, s48, 8")
    A("v_lshl_add_u32 v3, v7, 2, s35")
    A.nop(6)
    A.parity_add(56, 60)
    A(f"ds_write_b32 v3, v60 offset:{L_QPART}")
    A.lds_inc(L_CNTQ)
    A.stamp()
    A("s_load_dword s56, s[26:27], 0")
    A.srd(44, 26, WS_SIZE)
    A("v_lshlrev_b32 v7, 3, v7")
    A("s_waitcnt lgkmcnt(0)")
    A("s_add_u32 s56, s56, 1"); A("v_mov_b32 v10, s56")
    if cfg.gate_on_v:
        A.lds_wait(L_CNTV, 8)
    A.stamp()
    A("s_cmp_lt_u32 s48, 3"); A("s_cbranch_scc0 L_GU")
    A("s_lshl_b32 s49, s31, 8"); A("s_lshl_b32 s35, s32, 4"); A("s_add_u32 s49, s49, s35"); A("s_mul_i32 s49, s49, 1152")
    A("s_mul_i32 s50, s48, 384"); A("s_add_u32 s49, s49, s50")
    A.srd(36, 12, 16*1152, 49)
    A("s_mul_i32 s49, s29, 576"); A("s_mul_i32 s35, s30, 18"); A("s_add_u32 s49, s49, s35"); A("s_mul_i32 s49, s49, 1152"); A("s_add_u32 s49, s49, s50")
    A.srd(40, 20, 18*1152, 49)
    A("v_mul_u32_u24 v3, 1152, v8"); A("v_add_u32 v3, v3, v9")
    A("v_mov_b32 v4, v3"); A(f"v_mov_b32 v5, {OOB}"); A("v_cmp_gt_u32 vcc, 48, v1"); A("s_nop 1"); A("v_cndmask_b32 v4, v5, v4, vcc")
    A("s_movk_i32 s51, 9216"); A("s_movk_i32 s52, 6912"); A("s_movk_i32 s53, 13824")
    WO, WD = 32, 56
    for tau in range(2):
        for cb in range(3):
            r = WO + 4*(tau*3+cb)
            A(f"buffer_load_dwordx4 v[{r}:{r+3}], v3, s[36:39], {'0' if tau==0 else 's51'} offen offset:{128*cb}{cfg.nt_w}")
    def down_loads():
        for tau in range(3):
            for cb in range(3):
                r = WD + 4*(tau*3+cb)
                A(f"buffer_load_dwordx4 v[{r}:{r+3}], v4, s[40:43], {('0','s52','s53')[tau]} offen offset:{128*cb}{cfg.nt_w}")
    if not cfg.down_late: down_loads()
    A.stamp()
    A("v_lshlrev_b32 v6, 2, v8")
    A.lds_wait(L_FLAGO, 1, reads=[f"ds_read_b32 v16, v6 offset:{L_OO}", f"ds_read_b32 v17, v6 offset:{L_OO+32}"])
    A.stamp()
    build_b(A, 20, "v16"); build_b(A, 24, "v17")
    ACC = 96
    A(f"s_waitcnt vmcnt({0 if cfg.down_late else 9})")
    for tau in range(2):
        for cb in range(3):
            mfma(A, ACC+4*cb, WO+4*(tau*3+cb), 20+4*tau, None if tau == 0 else ACC+4*cb)
    A(f"s_mul_i32 s54, s33, {S3A}"); A("s_mul_i32 s35, s48, 1536"); A("s_add_u32 s55, s54, s35"); A(f"s_add_u32 s55, s55, {WS_H3A}")
    A(f"s_add_u32 s54, s54, {WS_H3A+4608}"); A("s_lshl_b32 s35, s48, 3"); A("s_add_u32 s54, s54, s35")
    for cb in range(3): A(f"v_mov_b32 v{111+2*cb}, v10")
    A.nop(2)
    for cb in range(3):
        A.parity_add(ACC+4*cb, 110+2*cb)
        A(f"buffer_store_dwordx2 v[{110+2*cb}:{111+2*cb}], v7, s[44:47], s55 offen offset:{512*cb}{cfg.st}")
    A.stamp()
    A("v_add_f32 v116, v110, v112"); A("v_add_f32 v116, v116, v114")
    A.wave_sum(["v116"])
    A("v_mov_b32 v117, v10"); A("v_mov_b32 v118, 0"); A("v_mov_b32 v119, v10")
    A("s_mov_b32 s50, 0"); A("s_mov_b32 s51, 0x80000000"); A("s_mov_b64 exec, s[50:51]")
    Lu2 = A.lab("u2"); Lud = A.lab("ud")
    A("s_cmp_eq_u32 s48, 2"); A(f"s_cbranch_scc1 {Lu2}")
    A(f"buffer_store_dwordx2 v[116:117], v2, s[44:47], s54 offen{cfg.st}"); A(f"s_branch {Lud}")
    A(f"{Lu2}:"); A(f"buffer_store_dwordx4 v[116:119], v2, s[44:47], s54 offen{cfg.st}")
    A(f"{Lud}:"); A("s_mov_b64 exec, -1")
    if cfg.down_late: down_loads()
    A.lds_wait(L_FLAGA, 1, reads=[f"ds_read_b32 v{16+t}, v6 offset:{L_AA+24*t}" for t in range(3)])
    A.stamp()
    for t in range(3): build_b(A, 20+4*t, f"v{16+t}")
    A(f"s_waitcnt vmcnt({0 if cfg.down_late else 4})")
    A.nop(1)
    for tau in range(3):
        for cb in range(3):
            mfma(A, ACC+4*cb, WD+4*(tau*3+cb), 20+4*tau, None if tau == 0 else ACC+4*cb)
    A(f"s_mul_i32 s54, s33, {S4A}"); A("s_mul_i32 s35, s48, 1536"); A("s_add_u32 s55, s54, s35"); A(f"s_add_u32 s55, s55, {WS_H4A}")
    A.nop(4)
    for cb in range(3):
        A.parity_add(ACC+4*cb, 110+2*cb)
        A(f"buffer_store_dwordx2 v[{110+2*cb}:{111+2*cb}], v7, s[44:47], s55 offen offset:{512*cb}{cfg.st}")
    A.stamp()
    A.stamp_flush()
    A("s_endpgm")
    A("L_GU:")
    A("s_sub_u32 s48, s48, 3")
    A("s_mul_i32 s49, s30, 18"); A("s_mul_i32 s49, s49, 9216"); A("s_mul_i32 s35, s29, 1152"); A("s_add_u32 s49, s49, s35")
    A("s_mul_i32 s35, s48, 384"); A("s_add_u32 s49, s49, s35")
    A.srd(36, 16, 18*9216, 49); A.srd(40, 18, 18*9216, 49)
    A("v_mul_u32_u24 v3, 9216, v8"); A("v_add_u32 v3, v3, v9")
    A(f"v_mov_b32 v5, {OOB}"); A("v_cmp_gt_u32 vcc, 48, v1"); A("s_nop 1"); A("v_cndmask_b32 v3, v5, v3, vcc")
    A(f"s_mov_b32 s52, {6*9216}"); A(f"s_mov_b32 s53, {12*9216}")
    WG = 32
    def idx(tau, m, cb): return WG + 4*(tau*6 + m*3 + cb)
    for tau in range(3):
        for m in range(2):
            for cb in range(3):
                r = idx(tau, m, cb)
                A(f"buffer_load_dwordx4 v[{r}:{r+3}], v3, s[{36+4*m}:{39+4*m}], {('0','s52','s53')[tau]} offen offset:{128*cb}{cfg.nt_w}")
    A.stamp()
    A("v_lshlrev_b32 v6, 2, v8")
    A(f"s_mul_i32 s54, s33, {S3C}"); A("s_mul_i32 s35, s48, 1536"); A("s_add_u32 s54, s54, s35"); A(f"s_add_u32 s54, s54, {WS_H3C}")
    A("s_add_u32 s55, s54, 4608")
    A.lds_wait(L_FLAGC, 1, reads=[f"ds_read_b32 v{4+t if t<2 else 9}, v6 offset:{L_CC+24*t}" for t in range(3)])
    A.stamp()
    build_b(A, 16, "v4"); build_b(A, 20, "v5"); build_b(A, 24, "v9")
    ACC = 104
    for tau in range(3):
        A(f"s_waitcnt vmcnt({12-6*tau})")
        for m in range(2):
            for cb in range(3):
                a = ACC + 4*(m*3+cb)
                mfma(A, a, idx(tau, m, cb), 16+4*tau, None if tau == 0 else a)
    for i in range(6): A(f"v_mov_b32 v{33+2*i}, v10")
    A.nop(2)
    for m in range(2):
        for cb in range(3):
            i = m*3+cb
            A.parity_add(ACC+4*i, 32+2*i)
            A(f"buffer_store_dwordx2 v[{32+2*i}:{33+2*i}], v7, s[44:47], {'s54' if m==0 else 's55'} offen offset:{512*cb}{cfg.st}")
    A.stamp()
    A.stamp_flush()
    A("s_endpgm")

def role_C(A, cfg):
    A("L_C:")
    A("s_setprio 3")
    A("s_load_dword s56, s[26:27], 0")
    A.srd(40, 4, 1152)
    A.srd(44, 26, WS_SIZE)
    A.srd(36, 22, 1152)
    A("v_lshlrev_b32 v3, 4, v1")
    A("v_and_b32 v9, 15, v1")
    A("v_lshlrev_b32 v4, 2, v9"); A("s_mul_i32 s48, s30, 36"); A("v_add_u32 v8, s48, v4")
    A(f"v_mov_b32 v5, {OOB}"); A("v_cmp_gt_u32 vcc, 9, v9"); A("s_nop 1"); A("v_cndmask_b32 v4, v5, v8, vcc")
    A("buffer_load_dwordx4 v[16:19], v3, s[40:43], 0 offen")
    A("buffer_load_dwordx4 v[20:23], v3, s[40:43], 0 offen offset:1024")
    A("buffer_load_dword v24, v4, s[40:43], 0 offen")
    A("v_lshrrev_b32 v5, 4, v1")
    A("s_mul_i32 s49, s30, 144")
    A("v_lshlrev_b32 v6, 4, v9")
    A("v_mov_b32 v37, v6")
    A("v_add_u32 v7, s49, v6")
    A(f"v_add_u32 v4, {4608-144}, v6")
    A("v_cmp_gt_u32 vcc, 9, v9"); A("s_nop 1"); A("v_cndmask_b32 v4, v4, v7, vcc")
    A(f"v_mul_u32_u24 v25, {S3A}, v5"); A("v_add_u32 v25, v25, v4")
    A(f"v_mul_u32_u24 v26, {S4A}, v5"); A("v_add_u32 v26, v26, v7")
    A("v_lshl_add_u32 v27, v5, 13, v6")
    A(f"v_mov_b32 v4, 9216"); A("v_cndmask_b32 v4, v4, v7, vcc")
    A("v_bfe_u32 v28, v1, 4, 1"); A("v_mul_u32_u24 v28, 4608, v28"); A("v_add_u32 v4, v4, v28")
    A("v_lshrrev_b32 v28, 5, v1"); A(f"v_mul_u32_u24 v28, {S3C}, v28"); A("v_add_u32 v28, v28, v4")
    A("v_lshrrev_b32 v29, 5, v1"); A("v_lshlrev_b32 v29, 11, v29"); A("v_and_b32 v4, 31, v1"); A("v_lshl_add_u32 v29, v4, 4, v29")
    A("v_lshrrev_b32 v30, 3, v1"); A("v_lshlrev_b32 v30, 11, v30"); A("v_and_b32 v4, 7, v1"); A("v_lshl_add_u32 v30, v4, 4, v30")
    A("v_bfe_u32 v31, v1, 2, 2"); A("v_lshlrev_b32 v31, 6, v31"); A("v_lshl_add_u32 v31, v5, 4, v31")
    A("v_and_b32 v4, 3, v1"); A("v_lshl_add_u32 v31, v4, 1, v31"); A("v_lshlrev_b32 v31, 2, v31")
    def mask64(pred):
        m = 0
        for l in range(64):
            if pred(l): m |= 1 << l
        return m
    m11 = mask64(lambda l: (l & 15) < 11); m9 = mask64(lambda l: (l & 15) < 9)
    m3c = mask64(lambda l: (l & 15) < 9 or ((l & 15) == 9 and not (l & 16)))
    for name, reg, m in (("m11", 58, m11), ("m9", 60, m9), ("m3c", 62, m3c)):
        A(f"s_mov_b32 s{reg}, {m & 0xffffffff}"); A(f"s_mov_b32 s{reg+1}, {m >> 32}")
    A("v_mov_b32 v6, 0x3f803f80"); A("v_mov_b32 v32, 0")
    A("s_waitcnt vmcnt(0) lgkmcnt(0)")
    A("s_add_u32 s56, s56, 1"); A("v_mov_b32 v10, s56")
    for i in range(8): A(f"v_dot2_f32_bf16 v32, v{16+i}, v6, v32")
    A.nop(3)
    A.wave_sum(["v32"])
    A("v_readlane_b32 s57, v32, 63")
    A("v_lshlrev_b32 v16, 16, v24"); A("v_and_b32 v17, 0xffff0000, v24")
    A.stamp()
    A("v_lshlrev_b32 v3, 2, v1")
    A.lds_wait(L_CNTQ, 6, reads=[f"ds_read_b32 v{48+i}, v3 offset:{L_QPART+256*i}" for i in range(6)], tmp="v4")
    A.stamp()
    A("v_add_f32 v48, v48, v49"); A("v_add_f32 v50, v50, v51"); A("v_add_f32 v52, v52, v53")
    A("v_add_f32 v48, v48, v50"); A("v_add_f32 v48, v48, v52"); A("v_mov_b32 v49, v10")
    A("s_and_b32 s48, s32, 3"); A("s_lshr_b32 s49, s32, 2")
    A("s_lshl_b32 s50, s31, 13"); A(f"s_add_u32 s50, s50, {WS_H1}")
    A("s_lshl_b32 s35, s48, 11"); A("s_add_u32 s51, s50, s35"); A("s_lshl_b32 s35, s49, 9"); A("s_add_u32 s51, s51, s35")
    A("v_lshlrev_b32 v4, 3, v1")
    A(f"buffer_store_dwordx2 v[48:49], v4, s[44:47], s51 offen{cfg.st}")
    A("s_add_u32 s51, s50, 4096")
    L = A.lab("h1"); A(f"{L}:")
    for hh in range(2):
        for rq in range(4):
            r = 48 + 4*(hh*4+rq)
            A(f"buffer_load_dwordx4 v[{r}:{r+3}], v29, s[44:47], {'s50' if hh==0 else 's51'} offen offset:{512*rq}{cfg.ld}")
    A("s_waitcnt vmcnt(0)")
    A.check_tags([f"v{48+4*i+o}" for i in range(8) for o in (1, 3)], "v4", L)
    for hh in range(2):
        r = 48 + 16*hh
        for o in (0, 2):
            A(f"v_add_f32 v{r+o}, v{r+o}, v{r+4+o}"); A(f"v_add_f32 v{r+8+o}, v{r+8+o}, v{r+12+o}")
        for o in (0, 2): A(f"v_add_f32 v{r+o}, v{r+o}, v{r+8+o}")
        A(f"v_cvt_pk_bf16_f32 v{r}, v{r}, v{r+2}")
        A(f"ds_write_b32 v3, v{r} offset:{L_Q+256*hh}")
    A.lds_set(L_FLAGQ)
    A.stamp()
    A("s_lshl_b32 s48, s31, 15"); A(f"s_add_u32 s48, s48, {WS_H2O}")
    A("s_lshl_b32 s35, s32, 7"); A("s_add_u32 s49, s48, s35"); A("s_add_u32 s50, s49, 16384")
    A("s_lshl_b32 s35, s32, 11"); A("s_add_u32 s51, s48, s35")
    A("s_lshl_b32 s52, s31, 9"); A(f"s_add_u32 s52, s52, {WS_H2ML}")
    A("s_lshr_b32 s35, s32, 3"); A("s_lshl_b32 s35, s35, 8"); A("s_add_u32 s53, s52, s35")
    A("s_lshl_b32 s35, s32, 4"); A("s_add_u32 s52, s52, s35")
    A("v_lshlrev_b32 v33, 8, v1")
    A("v_lshlrev_b32 v34, 2, v1")
    A("v_lshlrev_b32 v35, 3, v1")
    A("v_lshrrev_b32 v36, 4, v1"); A("v_lshlrev_b32 v36, 4, v36")
    A("v_mov_b32 v49, v10"); A("v_mov_b32 v51, v10"); A("v_mov_b32 v53, v10"); A("v_mov_b32 v55, v10"); A("v_mov_b32 v57, v10"); A("v_mov_b32 v59, v10")
    A(f"s_mov_b32 s54, {f2u(SC)}")
    A.lds_wait(L_CNTO, 8, reads=[f"ds_read_b64 v[60:61], v31 offset:{L_OACC}", f"ds_read_b64 v[62:63], v31 offset:{L_OACC+32}",
                                 f"ds_read_b32 v64, v34 offset:{L_M}", f"ds_read_b32 v65, v34 offset:{L_L}"], tmp="v4")
    A.stamp()
    A("v_mov_b32 v48, v60"); A("v_mov_b32 v50, v61"); A("v_mov_b32 v52, v62"); A("v_mov_b32 v54, v63")
    A("v_mul_f32 v56, s54, v64"); A("v_mov_b32 v58, v65")
    A(f"buffer_store_dwordx4 v[48:51], v30, s[44:47], s49 offen{cfg.st}")
    A(f"buffer_store_dwordx4 v[52:55], v30, s[44:47], s50 offen{cfg.st}")
    A("s_mov_b64 exec, 3")
    A(f"buffer_store_dwordx4 v[56:59], v33, s[44:47], s52 offen{cfg.st}")
    A("s_mov_b64 exec, -1")
    L = A.lab("h2"); A(f"{L}:")
    for m in range(4): A(f"buffer_load_dwordx2 v[{64+2*m}:{65+2*m}], v35, s[44:47], s51 offen offset:{512*m}{cfg.ld}")
    for m in range(4): A(f"buffer_load_dwordx4 v[{72+4*m}:{75+4*m}], v36, s[44:47], s53 offen offset:{64*m}{cfg.ld}")
    A("s_waitcnt vmcnt(0)")
    A.check_tags([f"v{65+2*m}" for m in range(4)] + [f"v{73+4*m+o}" for m in range(4) for o in (0, 2)], "v4", L)
    A.stamp()
    A("v_max3_f32 v4, v72, v76, v80"); A("v_max_f32 v4, v4, v84")
    A.xrow_sum(["v4"], ["v5"], op="v_max_f32")
    for m in range(4): A(f"v_sub_f32 v{72+4*m}, v{72+4*m}, v4")
    for m in range(4): A(f"v_exp_f32 v{72+4*m}, v{72+4*m}")
    A.nop(1)
    A("v_mul_f32 v4, v72, v74"); A("v_mul_f32 v5, v72, v64")
    for m in range(1, 4):
        A(f"v_fmac_f32 v4, v{72+4*m}, v{74+4*m}"); A(f"v_fmac_f32 v5, v{72+4*m}, v{64+2*m}")
    A.xrow_sum(["v4", "v5"], ["v6", "v7"])
    A("v_rcp_f32 v4, v4"); A.nop(1); A("v_mul_f32 v5, v5, v4")
    A("v_cvt_pk_bf16_f32 v5, v5, v5")
    A("v_lshlrev_b32 v6, 2, v9")
    A("s_mov_b64 exec, 0xffff"); A(f"ds_write_b32 v6, v5 offset:{L_OO}"); A("s_mov_b64 exec, -1")
    A.lds_set(L_FLAGO)
    A.stamp()
    A(f"s_mul_i32 s48, s29, {32*S3A}"); A(f"s_add_u32 s48, s48, {WS_H3A}")
    A("s_lshl_b32 s49, s33, 8"); A(f"s_add_u32 s49, s49, {WS_H3B}")
    def reduce_gather(nl, voff, sbase, sstep, mask, lab):
        A(f"s_mov_b64 exec, s[{mask}:{mask+1}]")
        L = A.lab(lab); A(f"{L}:")
        A(f"s_mov_b32 s50, {sbase}")
        for i in range(nl):
            A(f"buffer_load_dwordx4 v[{48+4*i}:{51+4*i}], {voff}, s[44:47], s50 offen{cfg.ld}")
            if i < nl-1: A(f"s_add_u32 s50, s50, {sstep}")
        A("s_waitcnt vmcnt(0)")
        A.check_tags([f"v{48+4*i+o}" for i in range(nl) for o in (1, 3)], "v4", L)
        n = nl; step = 1
        while step < nl:
            for i in range(0, nl, 2*step):
                for o in (0, 2): A(f"v_add_f32 v{48+4*i+o}, v{48+4*i+o}, v{48+4*(i+step)+o}")
            step *= 2
        A("s_mov_b64 exec, -1")
    reduce_gather(8, "v25", "s48", 4*S3A, 58, "h3a")
    A.xrow_sum(["v48", "v50"], ["v6", "v7"])
    A("s_mov_b64 exec, 0x7ff")
    A(f"buffer_store_dwordx4 v[48:51], v37, s[44:47], s49 offen{cfg.st}")
    A("s_mov_b64 exec, -1")
    A.stamp()
    A("s_lshl_b32 s48, s30, 8"); A(f"s_add_u32 s48, s48, {WS_H3B}")
    reduce_gather(2, "v27", "s48", 32768, 58, "h3b")
    A.xrow_sum(["v48", "v50"], ["v6", "v7"])
    A.stamp()
    A("v_readlane_b32 s50, v48, 9"); A("v_readlane_b32 s51, v50, 9"); A("v_readlane_b32 s52, v48, 10")
    A("v_cvt_pk_bf16_f32 v4, v48, v50")
    A("v_mov_b32 v5, s57"); A("v_add_f32 v5, s50, v5"); A("v_add_f32 v5, s51, v5"); A("v_add_f32 v5, s52, v5")
    A("v_lshlrev_b32 v6, 16, v4"); A("v_and_b32 v7, 0xffff0000, v4")
    A("v_add_f32 v6, v6, v16"); A("v_add_f32 v7, v7, v17")
    A("v_cvt_pk_bf16_f32 v4, v6, v7")
    A(f"v_mul_f32 v5, {f2u(1.0/576)}, v5")
    A("v_lshlrev_b32 v18, 16, v4"); A("v_and_b32 v19, 0xffff0000, v4")
    A("v_sub_f32 v6, v18, v5"); A("v_sub_f32 v7, v19, v5")
    A("v_cvt_pk_bf16_f32 v20, v6, v6"); A("v_cvt_pk_bf16_f32 v21, v7, v7")
    A("v_lshlrev_b32 v4, 3, v9")
    A("s_mov_b64 exec, 0x1ff"); A(f"ds_write_b64 v4, v[20:21] offset:{L_CC}"); A("s_mov_b64 exec, -1")
    A.lds_set(L_FLAGC)
    A.stamp()
    A("v_mul_f32 v6, v6, v6"); A("v_fmac_f32 v6, v7, v7")
    A("v_cmp_gt_u32 vcc, 9, v9"); A("s_nop 1"); A("v_cndmask_b32 v6, 0, v6, vcc")
    A.nop(2)
    for st in ("row_ror:8", "row_ror:4", "row_ror:2", "row_ror:1"):
        A(f"v_add_f32_dpp v6, v6, v6 {st} row_mask:0xf bank_mask:0xf"); A.nop(2)
    A("v_mov_b32 v20, v6"); A("v_mov_b32 v21, v10"); A("v_mov_b32 v22, v6"); A("v_mov_b32 v23, v10")
    A(f"s_mul_i32 s48, s33, {S3C}"); A(f"s_add_u32 s48, s48, {WS_H3C+9216}")
    A("s_mov_b64 exec, 1"); A(f"buffer_store_dwordx4 v[20:23], v2, s[44:47], s48 offen{cfg.st}"); A("s_mov_b64 exec, -1")
    A(f"s_mul_i32 s48, s29, {32*S3C}"); A(f"s_add_u32 s48, s48, {WS_H3C}")
    reduce_gather(16, "v28", "s48", 2*S3C, 62, "h3c")
    A.stamp()
    A("v_mov_b32 v6, v48"); A("v_mov_b32 v7, v50"); A.nop(1)
    A("v_permlane32_swap_b32 v48, v6"); A("v_permlane32_swap_b32 v50, v7"); A.nop(1)
    A("v_add_f32 v48, v48, v6"); A("v_add_f32 v50, v50, v7")
    A("v_mov_b32 v6, v48"); A("v_mov_b32 v7, v50"); A.nop(1)
    A("v_permlane16_swap_b32 v48, v6"); A("v_permlane16_swap_b32 v50, v7"); A.nop(1)
    A("v_readlane_b32 s50, v48, 9")
    A(f"v_mov_b32 v4, {f2u(1.0/576)}"); A(f"v_mov_b32 v5, {f2u(1e-5)}")
    A("v_fma_f32 v4, s50, v4, v5"); A("v_rsq_f32 v4, v4"); A.nop(1)
    A("v_mul_f32 v48, v48, v4"); A("v_mul_f32 v50, v50, v4"); A("v_mul_f32 v6, v6, v4"); A("v_mul_f32 v7, v7, v4")
    A("v_cvt_pk_bf16_f32 v48, v48, v50"); A("v_cvt_pk_bf16_f32 v6, v6, v7")
    A("v_and_b32 v50, 0xffff0000, v48"); A("v_lshlrev_b32 v48, 16, v48")
    A("v_and_b32 v7, 0xffff0000, v6"); A("v_lshlrev_b32 v6, 16, v6")
    k0 = 2.0*math.sqrt(2.0/math.pi)*1.4426950408889634; k1 = k0*0.044715
    A(f"v_mov_b32 v4, {f2u(k1)}"); A(f"v_mov_b32 v5, {f2u(k0)}")
    A("v_mul_f32 v52, v48, v48"); A("v_mul_f32 v53, v50, v50")
    A("v_fma_f32 v52, v52, v4, v5"); A("v_fma_f32 v53, v53, v4, v5")
    A("v_mul_f32 v52, v52, v48"); A("v_mul_f32 v53, v53, v50")
    A("v_exp_f32 v52, -v52"); A("v_exp_f32 v53, -v53"); A.nop(1)
    A("v_add_f32 v52, 1.0, v52"); A("v_add_f32 v53, 1.0, v53")
    A("v_rcp_f32 v52, v52"); A("v_rcp_f32 v53, v53"); A.nop(1)
    A("v_mul_f32 v52, v52, v48"); A("v_mul_f32 v53, v53, v50")
    A("v_cvt_pk_bf16_f32 v52, v52, v53")
    A("v_and_b32 v53, 0xffff0000, v52"); A("v_lshlrev_b32 v52, 16, v52")
    A("v_mul_f32 v52, v52, v6"); A("v_mul_f32 v53, v53, v7")
    A("v_cvt_pk_bf16_f32 v52, v52, v52"); A("v_cvt_pk_bf16_f32 v53, v53, v53")
    A("v_lshlrev_b32 v4, 3, v9")
    A("s_mov_b64 exec, 0x1ff"); A(f"ds_write_b64 v4, v[52:53] offset:{L_AA}"); A("s_mov_b64 exec, -1")
    A.lds_set(L_FLAGA)
    A.stamp()
    A(f"s_mul_i32 s48, s29, {32*S4A}"); A(f"s_add_u32 s48, s48, {WS_H4A}")
    A("s_lshl_b32 s49, s33, 8"); A(f"s_add_u32 s49, s49, {WS_H4B}")
    A("v_mov_b32 v49, v10"); A("v_mov_b32 v51, v10")
    reduce_gather(8, "v26", "s48", 4*S4A, 60, "h4a")
    A.xrow_sum(["v48", "v50"], ["v6", "v7"])
    A("s_mov_b64 exec, 0x1ff")
    A(f"buffer_store_dwordx4 v[48:51], v37, s[44:47], s49 offen{cfg.st}")
    A("s_mov_b64 exec, -1")
    A.stamp()
    A("s_cmp_eq_u32 s29, 0"); A("s_cbranch_scc0 L_Cdone")
    A("s_lshl_b32 s48, s30, 8"); A(f"s_add_u32 s48, s48, {WS_H4B}")
    reduce_gather(2, "v27", "s48", 32768, 60, "h4b")
    A.xrow_sum(["v48", "v50"], ["v6", "v7"])
    A("v_cvt_pk_bf16_f32 v4, v48, v50")
    A("v_lshlrev_b32 v6, 16, v4"); A("v_and_b32 v7, 0xffff0000, v4")
    A("v_add_f32 v6, v6, v18"); A("v_add_f32 v7, v7, v19")
    A("v_cvt_pk_bf16_f32 v4, v6, v7")
    A("s_mov_b64 exec, 0x1ff")
    A("buffer_store_dword v4, v8, s[36:39], 0 offen")
    A("s_mov_b64 exec, -1")
    A("s_cmp_eq_u32 s2, 0"); A("s_cbranch_scc0 L_Cdone")
    A("s_mov_b64 exec, 1")
    A(f"buffer_store_dword v10, v2, s[44:47], 0 offen{cfg.st}")
    A("s_mov_b64 exec, -1")
    A("L_Cdone:")
    A.stamp()
    A.stamp_flush()
    A("s_endpgm")

def gen(cfg, path):
    A = G(cfg)
    A(f"; @launch grid=(256,1,1) block=({NWAVES*64},1,1) lds={LDS_BYTES}")
    A('.amdgcn_target "amdgcn-amd-amdhsa--gfx950"')
    A(".text"); A(f".globl {KN}"); A(".p2align 8"); A(f".type {KN},@function"); A(f"{KN}:")
    prologue(A, cfg)
    base = A.nst
    for role in (role_A, role_W, role_C):
        A.nst = base
        role(A, cfg)
    A("L_end:")
    A("L_exit:")
    A("s_endpgm")
    A('.section .rodata,"a"'); A(".p2align 6"); A(f".amdhsa_kernel {KN}")
    A("  .amdhsa_next_free_vgpr 128"); A("  .amdhsa_next_free_sgpr 102"); A("  .amdhsa_accum_offset 128")
    A("  .amdhsa_group_segment_fixed_size 0"); A("  .amdhsa_kernarg_size 96"); A("  .amdhsa_user_sgpr_count 2")
    A("  .amdhsa_user_sgpr_kernarg_segment_ptr 1"); A("  .amdhsa_system_sgpr_workgroup_id_x 1"); A(".end_amdhsa_kernel")
    open(path, "w").write("\n".join(A.L) + "\n")

if __name__ == "__main__":
    gen(Cfg(), sys.argv[1] if len(sys.argv) > 1 else "k.s")
```
